```python
import torch

def _softmax(x, axis=-1):
    return torch.softmax(x, dim=axis)
def _gelu(x):
    return torch.nn.functional.gelu(x, approximate="tanh")
def _silu(x):
    return torch.nn.functional.silu(x)
def _sigmoid(x):
    return torch.sigmoid(x)
def _layernorm(x, axis=-1, eps=1e-5):
    m = x.mean(dim=axis, keepdim=True)
    v = x.var(dim=axis, keepdim=True, unbiased=False)
    return (x - m) / torch.sqrt(v + eps)
def _scatter_add(tgt, idx, src, axis=0):
    return tgt.clone().index_add_(axis, idx, src)
def _segment_sum(src, seg, n):
    out = torch.zeros((n,) + src.shape[1:], dtype=src.dtype)
    return out.index_add_(0, seg, src)
def _pad(x, pw):
    flat = tuple(v for pair in reversed(pw) for v in pair)
    return torch.nn.functional.pad(x, flat)

kernel_name = 'recurrent_scan__sliding_block_cached__moe_arch_mod__prompt'

def setup_inputs():

    _w = (lambda a: (lambda t: t.to(torch.bfloat16) if t.is_floating_point() else t)(torch.as_tensor(a)))
    def _A_setup():
        B, Sq, D = 1, 2048, 512
        Hq, Hkv, Sk, Dh = 32, 8, 2048, 128
        assert Hq % Hkv == 0, (Hq, Hkv)
        return {
            "x": _w((lambda *s: torch.randn(*s, dtype=torch.bfloat16) * 0.05)(B, Sq, D)),
            "k_cache": _w((lambda *s: torch.randn(*s, dtype=torch.bfloat16) * 0.8)(B, Hkv, Sk, Dh)),
            "v_cache": _w((lambda *s: torch.randn(*s, dtype=torch.bfloat16) * 0.2)(B, Hkv, Sk, Dh)),
            "wq": _w((lambda *s: torch.randn(*s, dtype=torch.bfloat16) * 0.8)(D, Hq * Dh) * (D ** -0.5)),
            "wo": _w((lambda *s: torch.randn(*s, dtype=torch.bfloat16) * 0.2)(Hq * Dh, D) * ((Hq * Dh) ** -0.5)),
        }
    _A_in = _A_setup()

    def _B_setup():
        B, S, D, F, C = 1, 2048, 512, 1792, 1
        return {
            "x": _w((lambda *s: torch.randn(*s, dtype=torch.bfloat16) * 0.05)(B, S, D)),
            "w_r": _w((lambda *s: torch.randn(*s, dtype=torch.bfloat16) * 0.2)(D)),
            "w_gate": _w((lambda *s: torch.randn(*s, dtype=torch.bfloat16) * 0.1)(D, F)),
            "w_up": _w((lambda *s: torch.randn(*s, dtype=torch.bfloat16) * 0.1)(D, F)),
            "w_down": _w((lambda *s: torch.randn(*s, dtype=torch.bfloat16) * 0.1)(F, D)),
        }
    _B_in = _B_setup()

    return {
        "A_x": _A_in["x"],
        "A_k_cache": _A_in["k_cache"],
        "A_v_cache": _A_in["v_cache"],
        "A_wq": _A_in["wq"],
        "A_wo": _A_in["wo"],
        "B_x": _B_in["x"],
        "B_w_r": _B_in["w_r"],
        "B_w_gate": _B_in["w_gate"],
        "B_w_up": _B_in["w_up"],
        "B_w_down": _B_in["w_down"],
    }

def reference(A_x, A_k_cache, A_v_cache, A_wq, A_wo, B_x, B_w_r, B_w_gate, B_w_up, B_w_down):
    def _A_ref(x, k_cache, v_cache, wq, wo):
        B, Sq, D = x.shape
        Hq, Dh = 32, 128
        Hkv, Sk = k_cache.shape[1], k_cache.shape[2]
        W = min(4096, max(256, Sk // 4))
        rep = Hq // Hkv
        q = (lambda x, *d: x.permute(*d))((x @ wq).reshape(B, Sq, Hq, Dh), 0, 2, 1, 3)
        k = (lambda x, n, axis: torch.repeat_interleave(x, n, dim=axis))(k_cache[:, :, Sk - W:, :], rep, axis=1)
        v = (lambda x, n, axis: torch.repeat_interleave(x, n, dim=axis))(v_cache[:, :, Sk - W:, :], rep, axis=1)
        scores = torch.einsum("bhqd,bhkd->bhqk", q, k) * (Dh ** -0.5)
        p = _softmax(scores, axis=-1)
        o = torch.einsum("bhqk,bhkd->bhqd", p, v)
        return (lambda x, *d: x.permute(*d))(o, 0, 2, 1, 3).reshape(B, Sq, Hq * Dh) @ wo

    def _B_ref(x, w_r, w_gate, w_up, w_down):
        B, S, D = x.shape
        C = 1
        r = x @ w_r
        idx = torch.argsort(-r, axis=-1)[:, :C]
        idx_e = (lambda x, n, axis: torch.repeat_interleave(x, n, dim=axis))(idx.reshape(B, C, 1), D, axis=2)
        x_sel = (lambda x, i, axis: torch.take_along_dim(x, i, dim=axis))(x, idx_e, axis=1)
        g = _silu(x_sel @ w_gate)
        u = x_sel @ w_up
        y = (g * u) @ w_down
        r_sel = _sigmoid((lambda x, i, axis: torch.take_along_dim(x, i, dim=axis))(r, idx, axis=1))
        y = y * r_sel.reshape(B, C, 1)
        b_off = (torch.arange(B) * S).reshape(B, 1)
        flat_idx = (idx + b_off).reshape(B * C)
        zero = (x * 0.0).reshape(B * S, D)
        upd = _scatter_add(zero, flat_idx, y.reshape(B * C, D), axis=0)
        return x + upd.reshape(B, S, D)

    x = A_x
    xn = _layernorm(x, axis=-1)
    s = _A_ref(xn, A_k_cache, A_v_cache, A_wq, A_wo)
    g = _silu(_B_ref(xn, B_w_r, B_w_gate, B_w_up, B_w_down))
    return x + s * g
```

```python
import sys
def gen(name, mode, depth, mfma=True, perm=True, reps=8, ksteps=32, shape='32', pitch=8192, dsread=True, ldsbytes=65536):
    L = []
    e = L.append
    e(f"; @launch grid=(256,1,1) block=(256,1,1) lds={ldsbytes}")
    e('.amdgcn_target "amdgcn-amd-amdhsa--gfx950"')
    e(".text\n.globl mb_kernel\n.p2align 8\n.type mb_kernel,@function\nmb_kernel:")
    e("s_cmp_ge_u32 s2, 256\ns_cbranch_scc1 L_end")
    e("s_load_dwordx4 s[4:7], s[0:1], 0\ns_load_dwordx2 s[20:21], s[0:1], 16")
    e("v_lshrrev_b32 v1, 6, v0\ns_nop 0\nv_readfirstlane_b32 s22, v1")
    e("v_and_b32 v0, 63, v0")
    e("s_waitcnt lgkmcnt(0)")
    e("s_mov_b32 s8, s4\ns_and_b32 s9, s5, 0xffff\ns_mov_b32 s10, 0x4000000\ns_mov_b32 s11, 0x20000")
    e("s_and_b32 s23, s2, 7\ns_lshl_b32 s23, s23, 10\ns_lshl_b32 s24, s22, 8\ns_add_u32 s23, s23, s24")
    if pitch == 1024:
        e("s_and_b32 s23, s2, 7\ns_mul_i32 s23, s23, 524288\ns_lshl_b32 s24, s22, 8\ns_add_u32 s23, s23, s24")
    NACC = 128
    for i in range(NACC):
        e(f"v_accvgpr_write_b32 a{i}, 0")
    if mode == 'x2':
        e("v_and_b32 v10, 31, v0\nv_lshlrev_b32 v10, 3, v10\nv_lshrrev_b32 v11, 5, v0")
        e(f"s_mov_b32 s25, {8*pitch}\nv_mul_lo_u32 v11, v11, s25\nv_add_u32 v10, v10, v11")
        for j in range(8):
            e(f"v_add_u32 v{2+j}, {j*pitch}, v10")
        regs_per_step = 16; nload = 8; rows_per_step = 16
    elif mode == 'x4':
        e("v_and_b32 v10, 15, v0\nv_lshlrev_b32 v10, 4, v10\nv_lshrrev_b32 v11, 4, v0")
        e(f"s_mov_b32 s25, {8*pitch}\nv_mul_lo_u32 v11, v11, s25\nv_add_u32 v10, v10, v11")
        for j in range(8):
            e(f"v_add_u32 v{2+j}, {j*pitch}, v10")
        regs_per_step = 32; nload = 8; rows_per_step = 32
    elif mode == 'lds':
        e("v_and_b32 v10, 15, v0\nv_lshlrev_b32 v10, 4, v10\nv_lshrrev_b32 v11, 4, v0")
        e(f"s_mov_b32 s25, {pitch}\nv_mul_lo_u32 v11, v11, s25\nv_add_u32 v10, v10, v11")
        for j in range(4):
            e(f"v_add_u32 v{2+j}, {j*4*pitch}, v10")
        regs_per_step = 0; nload = 4; rows_per_step = 16
    elif mode == 'none':
        regs_per_step = 0; nload = 0; rows_per_step = 16
    e("v_lshlrev_b32 v12, 4, v0")
    e("v_lshlrev_b32 v13, 3, v0\ns_lshl_b32 s26, s22, 13\ns_add_u32 s26, s26, 32768\nv_add_u32 v13, s26, v13")
    nsteps = ksteps if rows_per_step == 16 else ksteps // 2
    RAW = 64
    AF = 32
    BF = 16
    def loads(slot, sreg):
        out = []
        for j in range(nload):
            if mode == 'x2':
                r = RAW + slot * 16 + 2 * j
                out.append(f"buffer_load_dwordx2 v[{r}:{r+1}], v{2+j}, s[8:11], {sreg} offen")
            elif mode == 'x4':
                r = RAW + slot * 32 + 4 * j
                out.append(f"buffer_load_dwordx4 v[{r}:{r+3}], v{2+j}, s[8:11], {sreg} offen")
            elif mode == 'lds':
                out.append((f"s_add_u32 m0, s26, {(slot*4+j)*1024 % 8192}", f"buffer_load_dwordx4 v{2+j}, s[8:11], {sreg} offen lds"))
        return out
    stepbytes = rows_per_step * pitch
    wrap = nsteps * stepbytes
    e("s_mov_b32 s27, s23\ns_mov_b32 s28, 0")
    e("s_barrier")
    for dstep in range(depth):
        for ins in loads(dstep, "s27"):
            if isinstance(ins, tuple):
                e(ins[0]); e("s_nop 0"); e(ins[1])
            else:
                e(ins)
        e(f"s_add_u32 s27, s27, {stepbytes}")
    e(f"s_add_u32 s28, s28, {depth*stepbytes}")
    e("s_memtime s[12:13]\ns_memrealtime s[14:15]\ns_waitcnt lgkmcnt(0)")
    e(f"s_mov_b32 s29, {reps * nsteps // depth}")
    e(".p2align 6")
    e("L_loop:")
    for slot in range(depth):
        fill = []
        if nload:
            e(f"s_waitcnt vmcnt({(depth-1)*nload})")
        par = slot % 2
        if mode in ('x2',):
            raw = RAW + slot * 16
            perms = []
            for t in range(4):
                for p in range(4):
                    a = raw + 2 * (2 * p) + (t // 2); b = raw + 2 * (2 * p + 1) + (t // 2)
                    sel = "s30" if t % 2 == 0 else "s31"
                    perms.append(f"v_perm_b32 v{AF + par*16 + t*4 + p}, v{b}, v{a}, {sel}")
            if not perm: perms = []
            nm = 8
        elif mode == 'x4':
            raw = RAW + slot * 32
            perms = []
            for t in range(8):
                for p in range(4):
                    a = raw + 4 * (2 * p) + (t // 2); b = raw + 4 * (2 * p + 1) + (t // 2)
                    sel = "s30" if t % 2 == 0 else "s31"
                    perms.append(f"v_perm_b32 v{AF + (t*4 + p) % 32}, v{b}, v{a}, {sel}")
            if not perm: perms = []
            nm = 32
        else:
            perms = []
            nm = 8
        lds_ = []
        if dsread:
            if mode == 'lds':
                for t in range(8):
                    lds_.append(f"ds_read_b64_tr_b16 v[{AF + par*16 + 2*t}:{AF + par*16 + 2*t+1}], v13 offset:{(slot*4096 + t*512) % 8192}")
            nb = 2 if mode != 'x4' else 4
            for t in range(nb):
                lds_.append(f"ds_read_b128 v[{BF + (t*4) % 16}:{BF + (t*4) % 16 + 3}], v12 offset:{t*1024 + slot * 2048}")
        ld = loads(slot, "s27")
        fillers = list(perms) + ld + lds_
        mf = []
        for i in range(nm):
            if shape == '32':
                t = i % 4; q = (i // 4) % 2
                acc = (t * 2 + q) * 16
                mf.append(f"v_mfma_f32_32x32x16_bf16 a[{acc}:{acc+15}], v[{AF + (1-par)*16 + t*4}:{AF + (1-par)*16 + t*4+3}], v[{BF + q*4 + 8}:{BF + q*4 + 8+3}], a[{acc}:{acc+15}]")
            else:
                t = i % 8; q = i // 8
                acc = (t * 4 + q) * 4
                mf.append(f"v_mfma_f32_16x16x32_bf16 a[{acc}:{acc+3}], v[{AF + t*4}:{AF + t*4+3}], v[{BF + q*4}:{BF + q*4+3}], a[{acc}:{acc+3}]")
        if not mfma: mf = []
        n = max(len(mf), 1)
        per = (len(fillers) + n - 1) // n
        fi = 0
        for i in range(n):
            if mf: e(mf[i])
            for _ in range(per):
                if fi < len(fillers):
                    f = fillers[fi]; fi += 1
                    if isinstance(f, tuple):
                        e(f[0]); e("s_nop 0"); e(f[1])
                    else:
                        e(f)
        if nload:
            e(f"s_add_u32 s27, s27, {stepbytes}")
            e(f"s_add_u32 s28, s28, {stepbytes}")
            e(f"s_cmp_ge_u32 s28, {wrap}")
            e(f"s_cselect_b32 s26, {wrap}, 0") if False else None
            e(f"s_cbranch_scc0 L_nw{slot}")
            e(f"s_sub_u32 s27, s27, {wrap}\ns_sub_u32 s28, s28, {wrap}")
            e(f"L_nw{slot}:")
        if dsread:
            e("s_waitcnt lgkmcnt(0)")
    e("s_sub_u32 s29, s29, 1\ns_cmp_lg_u32 s29, 0\ns_cbranch_scc1 L_loop")
    e("s_waitcnt vmcnt(0) lgkmcnt(0)")
    e("s_memtime s[16:17]\ns_memrealtime s[18:19]\ns_waitcnt lgkmcnt(0)")
    e("s_sub_u32 s16, s16, s12\ns_subb_u32 s17, s17, s13")
    e("s_sub_u32 s34, s18, s14\ns_subb_u32 s35, s19, s15")
    e("s_lshl_b32 s24, s2, 2\ns_add_u32 s24, s24, s22\ns_lshl_b32 s24, s24, 5")
    e("v_mov_b32 v20, s16\nv_mov_b32 v21, s17\nv_mov_b32 v22, s34\nv_mov_b32 v23, s35\nv_mov_b32 v24, s14\nv_mov_b32 v25, s15\nv_mov_b32 v26, s18\nv_mov_b32 v27, s19")
    e("v_mov_b32 v28, s24")
    e("v_cmp_eq_u32 vcc, 0, v0\ns_and_saveexec_b64 s[36:37], vcc")
    e("global_store_dwordx4 v28, v[20:23], s[20:21]\nglobal_store_dwordx4 v28, v[24:27], s[20:21] offset:16")
    e("s_waitcnt vmcnt(0)")
    e("L_end:\ns_endpgm")
    e('.section .rodata,"a"\n.p2align 6\n.amdhsa_kernel mb_kernel')
    e("  .amdhsa_next_free_vgpr 512\n  .amdhsa_next_free_sgpr 96\n  .amdhsa_accum_offset 256\n  .amdhsa_group_segment_fixed_size 0\n  .amdhsa_kernarg_size 24\n  .amdhsa_user_sgpr_count 2\n  .amdhsa_user_sgpr_kernarg_segment_ptr 1\n  .amdhsa_system_sgpr_workgroup_id_x 1\n.end_amdhsa_kernel")
    txt = "\n".join(x for x in L if x is not None)
    txt = txt.replace("s_barrier\n", "s_mov_b32 s30, 0x05040100\ns_mov_b32 s31, 0x07060302\ns_barrier\n", 1)
    open(name, "w").write(txt + "\n")

if __name__ == "__main__":
    gen("a_none.s", 'none', 2)
    gen("a_none_nods.s", 'none', 2, dsread=False)
    gen("a_x2_d3.s", 'x2', 4)
    gen("a_x2_d3_nomfma.s", 'x2', 4, mfma=False, perm=False, dsread=False)
    gen("a_x2_d8.s", 'x2', 8)
    gen("a_x2_d8_nomfma.s", 'x2', 8, mfma=False, perm=False, dsread=False)
    gen("a_x4_d2.s", 'x4', 2, shape='16')
    gen("a_x4_d4.s", 'x4', 4, shape='16')
    gen("a_x4_d4_nomfma.s", 'x4', 4, shape='16', mfma=False, perm=False, dsread=False)
    gen("a_none16.s", 'none', 2, shape='16')
    gen("a_lds_d2.s", 'lds', 2)
    gen("a_lds_d2_nomfma.s", 'lds', 2, mfma=False, dsread=False)
    gen("a_x2_d4_wo.s", 'x2', 4, pitch=1024)
    gen("a_x2_d4_wo_nomfma.s", 'x2', 4, pitch=1024, mfma=False, perm=False, dsread=False)
```

```python
from mb1 import gen
for reps in (1,2,4,8,32):
    gen(f"b_none_r{reps}.s", 'none', 2, reps=reps)
    gen(f"b_lds_r{reps}.s", 'lds', 2, reps=reps)
    gen(f"b_x4_r{reps}.s", 'x4', 4, shape='16', reps=reps)
gen("b_none16_r16.s", 'none', 2, shape='16', reps=16)
```
